```python
import torch

def _softmax(x, axis=-1):
    return torch.softmax(x, dim=axis)

def _gelu(x):
    return torch.nn.functional.gelu(x, approximate='tanh')

def _silu(x):
    return torch.nn.functional.silu(x)

def _sigmoid(x):
    return torch.sigmoid(x)

def _layernorm(x, axis=-1, eps=1e-05):
    m = x.mean(dim=axis, keepdim=True)
    v = x.var(dim=axis, keepdim=True, unbiased=False)
    return (x - m) / torch.sqrt(v + eps)

def _scatter_add(tgt, idx, src, axis=0):
    return tgt.clone().index_add_(axis, idx, src)

def _segment_sum(src, seg, n):
    out = torch.zeros((n,) + src.shape[1:], dtype=src.dtype)
    return out.index_add_(0, seg, src)

def _pad(x, pw):
    flat = tuple((v for pair in reversed(pw) for v in pair))
    return torch.nn.functional.pad(x, flat)
kernel_name = 'adaLN_cond__spectral_gfnet__moe_arch_mod__prompt'

def setup_inputs():

    _w = lambda a: (lambda t: t.to(torch.bfloat16) if t.is_floating_point() else t)(torch.as_tensor(a))

    def _A_setup():
        B, S, D = (1, 2048, 640)
        Df = D // 2 + 1
        return {'x': _w((lambda *s: torch.randn(*s, dtype=torch.bfloat16) * 0.05)(B, S, D)), 'w_r': _w((lambda *s: torch.randn(*s, dtype=torch.bfloat16) * 3.2)(S, Df) * 0.02), 'w_i': _w((lambda *s: torch.randn(*s, dtype=torch.bfloat16) * 3.2)(S, Df) * 0.02)}
    _A_in = _A_setup()

    def _B_setup():
        B, S, D, F, C = (1, 2048, 640, 1728, 8)
        return {'x': _w((lambda *s: torch.randn(*s, dtype=torch.bfloat16) * 0.05)(B, S, D)), 'w_r': _w((lambda *s: torch.randn(*s, dtype=torch.bfloat16) * 0.2)(D)), 'w_gate': _w((lambda *s: torch.randn(*s, dtype=torch.bfloat16) * 0.2)(D, F)), 'w_up': _w((lambda *s: torch.randn(*s, dtype=torch.bfloat16) * 0.2)(D, F)), 'w_down': _w((lambda *s: torch.randn(*s, dtype=torch.bfloat16) * 0.2)(F, D))}
    _B_in = _B_setup()
    return {'A_x': _A_in['x'], 'A_w_r': _A_in['w_r'], 'A_w_i': _A_in['w_i'], 'B_x': _B_in['x'], 'B_w_r': _B_in['w_r'], 'B_w_gate': _B_in['w_gate'], 'B_w_up': _B_in['w_up'], 'B_w_down': _B_in['w_down'], 'c': _w((lambda *s: torch.randn(*s, dtype=torch.bfloat16) * 0.1)(1, 640) * 8.0), 'w_mod': _w((lambda *s: torch.randn(*s, dtype=torch.bfloat16) * 0.1)(640, 6 * 640) * 640 ** (-0.5) * 8.0)}

def reference(A_x, A_w_r, A_w_i, B_x, B_w_r, B_w_gate, B_w_up, B_w_down, c, w_mod):

    def _A_ref(x, w_r, w_i):
        B, S, D = x.shape
        X = (lambda x, axes=(-2, -1): torch.fft.rfft2(x.float(), dim=axes))(x, axes=(-2, -1))
        W = w_r + 1j * w_i
        X = X * W
        y = (lambda x, s, axes=(-2, -1): torch.fft.irfft2(x, s=s, dim=axes).to(torch.bfloat16))(X, (S, D), axes=(-2, -1))
        return y

    def _B_ref(x, w_r, w_gate, w_up, w_down):
        B, S, D = x.shape
        C = 8
        r = x @ w_r
        idx = torch.argsort(-r, axis=-1)[:, :C]
        idx_e = (lambda x, n, axis: torch.repeat_interleave(x, n, dim=axis))(idx.reshape(B, C, 1), D, axis=2)
        x_sel = (lambda x, i, axis: torch.take_along_dim(x, i, dim=axis))(x, idx_e, axis=1)
        g = _silu(x_sel @ w_gate)
        u = x_sel @ w_up
        y = g * u @ w_down
        r_sel = _sigmoid((lambda x, i, axis: torch.take_along_dim(x, i, dim=axis))(r, idx, axis=1))
        y = y * r_sel.reshape(B, C, 1)
        b_off = (torch.arange(B) * S).reshape(B, 1)
        flat_idx = (idx + b_off).reshape(B * C)
        zero = (x * 0.0).reshape(B * S, D)
        upd = _scatter_add(zero, flat_idx, y.reshape(B * C, D), axis=0)
        return x + upd.reshape(B, S, D)
    x = A_x
    mod = (_silu(c) @ w_mod).reshape(c.shape[0], 6, 1, -1)
    sa, ca, ga, sb, cb, gb = (mod[:, 0].clone(), mod[:, 1].clone(), mod[:, 2].clone(), mod[:, 3].clone(), mod[:, 4].clone(), mod[:, 5].clone())
    h = _layernorm(x, axis=-1) * (1 + ca) + sa
    x = x + ga * _A_ref(h, A_w_r, A_w_i)
    h = _layernorm(x, axis=-1) * (1 + cb) + sb
    x = x + gb * _B_ref(h, B_w_r, B_w_gate, B_w_up, B_w_down)
    return x
```

```python
import re, math

TRANS = ("v_exp_f32","v_log_f32","v_rcp_f32","v_rsq_f32","v_sqrt_f32","v_sin_f32","v_cos_f32","v_rcp_iflag_f32")

def _regs(tok):
    tok = tok.strip()
    tok = tok.replace("abs(","").replace(")","").lstrip("-").replace("|","")
    m = re.fullmatch(r"([vsa])(\d+)", tok)
    if m: return m.group(1), {int(m.group(2))}
    m = re.fullmatch(r"([vsa])\[(\d+):(\d+)\]", tok)
    if m: return m.group(1), set(range(int(m.group(2)), int(m.group(3))+1))
    if tok == "vcc": return "s", {106,107}
    if tok == "vcc_lo": return "s", {106}
    if tok == "vcc_hi": return "s", {107}
    if tok == "exec": return "s", {126,127}
    if tok == "exec_lo": return "s", {126}
    if tok == "exec_hi": return "s", {127}
    if tok == "m0": return "s", {124}
    return None, set()

def split_ops(s):
    out=[]; depth=0; cur=""
    for ch in s:
        if ch=="[": depth+=1
        if ch=="]": depth-=1
        if ch=="," and depth==0:
            out.append(cur.strip()); cur=""
        else: cur+=ch
    if cur.strip(): out.append(cur.strip())
    return out

class Ins:
    __slots__=("text","mn","cls","wv","ws","rv","rs","dpp_rv","trans","store_data","mfma_pass","slots","srcc")
    def __init__(s):
        s.wv=set(); s.ws=set(); s.rv=set(); s.rs=set(); s.dpp_rv=set(); s.trans=False; s.store_data=set(); s.mfma_pass=0; s.slots=1; s.srcc=set()

MODRE = re.compile(r"\s(op_sel|op_sel_hi|neg_lo|neg_hi|quad_perm|row_shl|row_shr|row_ror|row_mask|bank_mask|bound_ctrl|offset|offen|idxen|sc0|sc1|nt|off\b|clamp|wave_shl|wave_shr|row_mirror|row_half_mirror|row_bcast|dst_sel|src0_sel|src1_sel|dst_unused|offset0|offset1|glc|lds|mul:|div:|cbsz|abid|blgp)")

def parse(text):
    i=Ins(); i.text=text
    t=text.split(";")[0].strip()
    parts=t.split(None,1)
    mn=parts[0]; i.mn=mn
    rest=parts[1] if len(parts)>1 else ""
    m=MODRE.search(" "+rest)
    mods=""
    if m:
        mods=(" "+rest)[m.start():]; rest=(" "+rest)[:m.start()]
    ops=split_ops(rest)
    def addr(tok, vs, ss):
        k,r=_regs(tok)
        if k=="v": vs|=r
        elif k=="s": ss|=r
        elif k=="a": vs|={1000+x for x in r}
    if mn=="s_nop":
        i.cls="nop"; i.slots=int(ops[0],0)+1; return i
    if mn.startswith("v_mfma"):
        i.cls="mfma"
        addr(ops[0],i.wv,i.ws)
        for o in ops[1:]: addr(o,i.rv,i.rs)
        addr(ops[3],i.srcc,set())
        i.mfma_pass = 8 if "32x32" in mn else 4
        return i
    if mn.startswith("v_"):
        i.cls="valu"
        base=mn.replace("_e32","").replace("_e64","").replace("_dpp","").replace("_sdwa","")
        i.trans = base in TRANS
        if base.startswith("v_permlane") and "swap" in base:
            i.cls="permlane"
            for o in ops[:2]:
                addr(o,i.wv,i.ws); addr(o,i.rv,i.rs)
            return i
        nd=1
        if base in ("v_add_co_u32","v_sub_co_u32","v_addc_co_u32","v_subb_co_u32","v_subrev_co_u32","v_div_scale_f32","v_mad_u64_u32"): nd=2
        for o in ops[:nd]: addr(o,i.wv,i.ws)
        for o in ops[nd:]: addr(o,i.rv,i.rs)
        if base in ("v_fmac_f32","v_pk_fmac_f16","v_dot2c_f32_bf16","v_writelane_b32") : addr(ops[0],i.rv,i.rs)
        if base.startswith("v_cmpx"): i.ws|={126,127}
        isdpp = any(x in mods for x in ("quad_perm","row_shl","row_shr","row_ror","wave_sh","wave_ro","row_mirror","row_half_mirror","row_bcast","row_newbcast"))
        if isdpp:
            addr(ops[nd],i.dpp_rv,set())
            addr(ops[0],i.rv,i.rs)
        if base in ("v_readlane_b32","v_readfirstlane_b32"): i.cls="readlane"
        return i
    if mn.startswith("buffer_") or mn.startswith("global_"):
        i.cls="vmem"
        isstore = "store" in mn or "atomic" in mn
        if mn.startswith("buffer_"):
            if isstore:
                addr(ops[0],i.rv,i.rs)
                if "x3" in mn or "x4" in mn: addr(ops[0],i.store_data,set())
            else:
                addr(ops[0],i.wv,i.ws)
                if "d16" in mn: addr(ops[0],i.rv,i.rs)
            for o in ops[1:]: addr(o,i.rv,i.rs)
        else:
            if isstore:
                for o in ops: addr(o,i.rv,i.rs)
                if "x3" in mn or "x4" in mn: addr(ops[1],i.store_data,set())
            else:
                addr(ops[0],i.wv,i.ws)
                for o in ops[1:]: addr(o,i.rv,i.rs)
        return i
    if mn.startswith("ds_"):
        i.cls="ds"
        if "read" in mn or "permute" in mn or "swizzle" in mn or "rtn" in mn:
            addr(ops[0],i.wv,i.ws)
            for o in ops[1:]: addr(o,i.rv,i.rs)
        else:
            for o in ops: addr(o,i.rv,i.rs)
        return i
    if mn.startswith("s_"):
        i.cls="salu"
        if mn.startswith("s_cmp") or mn.startswith("s_cbranch") or mn in("s_branch","s_barrier","s_waitcnt","s_endpgm","s_setprio","s_sleep"):
            for o in ops: addr(o,i.rv,i.rs)
        else:
            if ops: addr(ops[0],i.wv,i.ws)
            for o in ops[1:]: addr(o,i.rv,i.rs)
            if "saveexec" in mn: i.ws|={126,127}
        return i
    raise ValueError("cannot parse: "+text)

VALUISH=("valu","permlane","readlane","mfma")

def need(p,c):
    n=0
    pv = p.cls in ("valu","permlane","readlane")
    if pv:
        if p.wv & c.dpp_rv: n=max(n,2)
        if c.cls=="permlane" and (p.wv & c.rv): n=max(n,2)
        if c.cls=="readlane" and (p.wv & c.rv): n=max(n,1)
        if p.trans and (p.wv & (c.rv)) and not (c.cls=="valu" and c.trans): n=max(n,1)
        if p.ws:
            if c.cls in VALUISH and (p.ws & c.rs): n=max(n,4 if c.cls=="readlane" or c.mn.startswith("v_writelane") or c.mn.startswith("v_div_fmas") else 2)
            if c.cls=="vmem" and (p.ws & c.rs): n=max(n,5)
            if (p.ws & {126,127}) and (c.dpp_rv): n=max(n,5)
            if (p.ws & {126,127}) and c.cls in("permlane","readlane","mfma"): n=max(n,4)
        if c.cls=="mfma" and (p.wv & c.rv): n=max(n,2)
    if p.cls=="vmem" and p.store_data and (p.store_data & c.wv): n=max(n,2)
    if p.cls=="mfma":
        big = 12 if p.mfma_pass==8 else 8
        if c.cls=="mfma":
            if p.wv & (c.rv - c.srcc): n=max(n,big)
            if (p.wv & c.srcc) and not (p.wv==c.srcc and p.mfma_pass==c.mfma_pass): n=max(n,big-2)
            if (p.wv & c.wv) and not (p.wv==c.srcc): n=max(n,big)
        else:
            if p.wv & (c.rv|c.wv): n=max(n,big)
            if c.cls in ("valu","permlane") and (p.srcc & c.wv): n=max(n, 7 if p.mfma_pass==8 else 3)
    return n

class Kern:
    def __init__(s,name):
        s.name=name; s.lines=[]; s.hist=[]; s.maxv=0; s.maxs=0
        s.free_pairs=[]; s.nextv=0; s.count=0
    def raw(s,t): s.lines.append(t)
    def comment(s,t): s.lines.append("    ; "+t)
    def label(s,l):
        s.I("s_nop 1")
        s.lines.append(l+":")
        s.hist=[]
    def I(s,text):
        ins=parse(text)
        if ins.cls!="nop":
            dist=0; req=0
            for p in reversed(s.hist):
                r=need(p,ins)-dist
                if r>req: req=r
                dist+=p.slots
                if dist>=20: break
            if req>0:
                s._app(parse("s_nop %d"%(req-1)))
        s._app(ins)
    def _app(s,ins):
        s.lines.append("    "+ins.text); s.hist.append(ins); s.count+=1
        if len(s.hist)>40: s.hist=s.hist[-40:]
        for r in ins.wv|ins.rv:
            if r<1000: s.maxv=max(s.maxv,r)
        for r in ins.ws|ins.rs:
            if r<102: s.maxs=max(s.maxs,r)
    def setbase(s,n): s.nextv=n; s.free_pairs=[]
    def v1(s):
        r=s.nextv; s.nextv+=1; return r
    def vn(s,n,align=None):
        a=align or (2 if n>=2 else 1)
        if n>=4 and align is None: a=4
        while s.nextv%a: s.nextv+=1
        r=s.nextv; s.nextv+=n; return r
    def cp(s):
        if s.free_pairs: return s.free_pairs.pop()
        return s.vn(2)
    def fr(s,*rs):
        for r in rs:
            assert r not in s.free_pairs
            s.free_pairs.append(r)

def P(r): return "v[%d:%d]"%(r,r+1)
def Q(r): return "v[%d:%d]"%(r,r+3)
def SP(r): return "s[%d:%d]"%(r,r+1)
def SQ(r): return "s[%d:%d]"%(r,r+3)
def f2u(x):
    import struct
    return struct.unpack("<I",struct.pack("<f",x))[0]
def fhex(x): return "0x%08x"%f2u(x)
```

```python
import math
from asmlib import *

def O(x): return x if isinstance(x,str) else P(x)

class CF:
    def __init__(s,k,sc):
        s.k=k; s.sc=sc
    def add(s,a,b,d=None):
        d=s.k.cp() if d is None else d
        s.k.I(f"v_pk_add_f32 {P(d)}, {O(a)}, {O(b)}"); return d
    def sub(s,a,b,d=None):
        d=s.k.cp() if d is None else d
        s.k.I(f"v_pk_add_f32 {P(d)}, {O(a)}, {O(b)} neg_lo:[0,1] neg_hi:[0,1]"); return d
    def addrot(s,a,b,sg,d=None):
        d=s.k.cp() if d is None else d
        if sg>0:
            s.k.I(f"v_pk_add_f32 {P(d)}, {O(a)}, {O(b)} op_sel:[0,1] op_sel_hi:[1,0] neg_lo:[0,1]")
        else:
            s.k.I(f"v_pk_add_f32 {P(d)}, {O(a)}, {O(b)} op_sel:[0,1] op_sel_hi:[1,0] neg_hi:[0,1]")
        return d
    def mul(s,a,w,conj=False,d=None):
        t=s.k.cp()
        s.k.I(f"v_pk_mul_f32 {P(t)}, {O(a)}, {O(w)} op_sel:[0,0] op_sel_hi:[1,0]")
        d=s.k.cp() if d is None else d
        ng="neg_hi:[1,0,0]" if conj else "neg_lo:[1,0,0]"
        s.k.I(f"v_pk_fma_f32 {P(d)}, {O(a)}, {O(w)}, {P(t)} op_sel:[1,1,0] op_sel_hi:[0,1,1] {ng}")
        s.k.fr(t); return d
    def scale(s,a,c,d=None):
        d=s.k.cp() if d is None else d
        s.k.I(f"v_pk_mul_f32 {P(d)}, {O(a)}, {O(c)}"); return d
    def fma(s,a,c,b,d=None,neg=False):
        d=s.k.cp() if d is None else d
        ng=" neg_lo:[1,0,0] neg_hi:[1,0,0]" if neg else ""
        s.k.I(f"v_pk_fma_f32 {P(d)}, {O(a)}, {O(c)}, {O(b)}{ng}"); return d
    def fmarot(s,a,c,b,sg,d=None):
        d=s.k.cp() if d is None else d
        ng="neg_lo:[1,0,0]" if sg>0 else "neg_hi:[1,0,0]"
        s.k.I(f"v_pk_fma_f32 {P(d)}, {O(a)}, {O(c)}, {O(b)} op_sel:[1,0,0] op_sel_hi:[0,1,1] {ng}"); return d

    def r2(s,x):
        a=s.add(x[0],x[1]); b=s.sub(x[0],x[1]); s.k.fr(x[0],x[1]); return [a,b]
    def r4(s,x,sg):
        k=s.k
        t0=s.add(x[0],x[2]); t1=s.sub(x[0],x[2]); t2=s.add(x[1],x[3]); t3=s.sub(x[1],x[3])
        k.fr(*x)
        y0=s.add(t0,t2); y2=s.sub(t0,t2); y1=s.addrot(t1,t3,sg); y3=s.addrot(t1,t3,-sg)
        k.fr(t0,t1,t2,t3)
        return [y0,y1,y2,y3]
    def r8(s,x,sg):
        k=s.k
        a=[s.add(x[j],x[j+4]) for j in range(4)]
        b=[s.sub(x[j],x[j+4]) for j in range(4)]
        k.fr(*x)
        e=s.r4(a,sg)
        c1=s.addrot(b[1],b[1],sg)
        c3=k.cp()
        if sg>0:
            k.I(f"v_pk_add_f32 {P(c3)}, {P(b[3])}, {P(b[3])} op_sel:[0,1] op_sel_hi:[1,0] neg_lo:[1,1] neg_hi:[1,0]")
        else:
            k.I(f"v_pk_add_f32 {P(c3)}, {P(b[3])}, {P(b[3])} op_sel:[0,1] op_sel_hi:[1,0] neg_lo:[1,0] neg_hi:[1,1]")
        t0=s.addrot(b[0],b[2],sg); t1=s.addrot(b[0],b[2],-sg)
        k.fr(*b)
        t2=s.add(c1,c3); t3=s.sub(c1,c3); k.fr(c1,c3)
        r=s.sc["rsqrt2"]
        y1=s.fma(t2,r,t0); y5=s.fma(t2,r,t0,neg=True)
        y3=s.fmarot(t3,r,t1,sg); y7=s.fmarot(t3,r,t1,-sg)
        k.fr(t0,t1,t2,t3)
        return [e[0],y1,e[1],y3,e[2],y5,e[3],y7]
    def r5(s,x,sg):
        k=s.k; sc=s.sc
        t1=s.add(x[1],x[4]); t2=s.add(x[2],x[3]); t3=s.sub(x[1],x[4]); t4=s.sub(x[2],x[3])
        k.fr(x[1],x[2],x[3],x[4])
        t5=s.add(t1,t2); y0=s.add(x[0],t5); k.fr(t5)
        m1=s.fma(t1,sc["c1"],x[0]); m1=s.fma(t2,sc["c2"],m1,d=m1)
        m2=s.fma(t1,sc["c2"],x[0]); m2=s.fma(t2,sc["c1"],m2,d=m2)
        k.fr(x[0],t1,t2)
        n1=s.scale(t3,sc["s1"]); n1=s.fma(t4,sc["s2"],n1,d=n1)
        n2=s.scale(t3,sc["s2"]); n2=s.fma(t4,sc["s1"],n2,d=n2,neg=True)
        k.fr(t3,t4)
        y1=s.addrot(m1,n1,sg); y4=s.addrot(m1,n1,-sg); y2=s.addrot(m2,n2,sg); y3=s.addrot(m2,n2,-sg)
        k.fr(m1,m2,n1,n2)
        return [y0,y1,y2,y3,y4]
    def r10(s,x,sg):
        A=[None]*5; B=[None]*5
        for n2 in range(5):
            a,b=s.r2([x[(2*n2)%10], x[(5+2*n2)%10]])
            A[n2]=a; B[n2]=b
        YA=s.r5(A,sg); YB=s.r5(B,sg)
        y=[None]*10
        for k2 in range(5):
            y[(6*k2)%10]=YA[k2]; y[(5+6*k2)%10]=YB[k2]
        return y

    def xbit(s,x,rbit,lbit):
        k=s.k; n=len(x); x=list(x)
        pairs=[(r,r|(1<<rbit)) for r in range(n) if not (r>>rbit)&1]
        if lbit in (4,5):
            op="v_permlane32_swap_b32" if lbit==5 else "v_permlane16_swap_b32"
            for (a,b) in pairs:
                for h in range(2):
                    k.I(f"{op} v{x[a]+h}, v{x[b]+h}")
            return x
        m0={3:0x00FF00FF,2:0x0F0F0F0F,1:0x33333333,0:0x55555555}[lbit]
        ctl_from_lo={3:"row_ror:8",2:"row_shr:4",1:"quad_perm:[2,3,0,1]",0:"quad_perm:[1,0,3,2]"}[lbit]
        ctl_from_hi={3:"row_ror:8",2:"row_shl:4",1:"quad_perm:[2,3,0,1]",0:"quad_perm:[1,0,3,2]"}[lbit]
        new=list(x)
        k.I(f"s_mov_b32 vcc_lo, 0x{m0:08x}"); k.I(f"s_mov_b32 vcc_hi, 0x{m0:08x}")
        for (a,b) in pairs:
            d=k.cp(); new[a]=d
            for h in range(2):
                k.I(f"v_cndmask_b32_dpp v{d+h}, v{x[b]+h}, v{x[a]+h}, vcc {ctl_from_lo} row_mask:0xf bank_mask:0xf bound_ctrl:0")
        m1=(~m0)&0xFFFFFFFF
        k.I(f"s_mov_b32 vcc_lo, 0x{m1:08x}"); k.I(f"s_mov_b32 vcc_hi, 0x{m1:08x}")
        for (a,b) in pairs:
            for h in range(2):
                k.I(f"v_cndmask_b32_dpp v{x[b]+h}, v{x[a]+h}, v{x[b]+h}, vcc {ctl_from_hi} row_mask:0xf bank_mask:0xf bound_ctrl:0")
            k.fr(x[a])
        return new
    def xhi3(s,x):
        x=s.xbit(x,2,5); x=s.xbit(x,1,4); x=s.xbit(x,0,3); return x
    def xlo3(s,x):
        x=s.xbit(x,2,2); x=s.xbit(x,1,1); x=s.xbit(x,0,0); return x

    def twiddle(s,vang):
        d=s.k.cp()
        s.k.I(f"v_cos_f32 v{d}, v{vang}"); s.k.I(f"v_sin_f32 v{d+1}, v{vang}")
        return d

def set_consts(k,base,names):
    vals={"rsqrt2":math.sqrt(0.5),"c1":math.cos(2*math.pi/5),"c2":math.cos(4*math.pi/5),
          "s1":math.sin(2*math.pi/5),"s2":math.sin(4*math.pi/5)}
    sc={}
    for n in names:
        v=vals[n] if isinstance(n,str) else n[1]
        nm=n if isinstance(n,str) else n[0]
        k.I(f"s_mov_b32 s{base}, {fhex(v)}"); k.I(f"s_mov_b32 s{base+1}, {fhex(v)}")
        sc[nm]=SP(base); base+=2
    return sc,base
```

```python
from gen import *

def k_cols():
    k=Kern("cols_kernel"); I=k.I
    I("s_cmp_ge_u32 s2, 321"); I("s_cbranch_scc1 L2_end")
    I("s_load_dwordx2 s[6:7], s[0:1], 96")
    sc,sn=set_consts(k,32,["rsqrt2",("scale",1.0/(2*2048*640))])
    cf=CF(k,sc)
    I("s_mov_b32 s15, 0xffff0000")
    I("v_lshrrev_b32 v1, 6, v0"); I("v_readfirstlane_b32 s3, v1")
    I("v_and_b32 v1, 63, v0")
    I("v_lshlrev_b32 v2, 4, v0")
    I("v_lshlrev_b32 v3, 2, v0")
    I("s_lshl_b32 s14, s3, 12"); I("v_lshlrev_b32 v4, 3, v1"); I("v_add_u32 v4, s14, v4")
    I("v_and_b32 v5, 7, v0")
    I("v_lshlrev_b32 v6, 1, v0")
    I("v_or_b32 v7, 1, v6")
    I("s_lshl_b32 s12, s2, 14"); I("s_lshl_b32 s13, s2, 13")
    I("s_waitcnt lgkmcnt(0)")
    I(f"s_add_u32 s16, s6, 0x{WS_T:x}"); I("s_addc_u32 s17, s7, 0"); I("s_add_u32 s16, s16, s12"); I("s_addc_u32 s17, s17, 0")
    I("s_mov_b32 s18, 16384"); I("s_mov_b32 s19, 0x00020000")
    I(f"s_add_u32 s20, s6, 0x{WS_WT:x}"); I("s_addc_u32 s21, s7, 0"); I("s_add_u32 s20, s20, s13"); I("s_addc_u32 s21, s21, 0")
    I("s_mov_b32 s22, 8192"); I("s_mov_b32 s23, 0x00020000")
    for j in range(1,4): I(f"s_movk_i32 s{24+j}, {4096*j}")
    k.setbase(8)
    L=[k.vn(4) for _ in range(4)]
    for j in range(4):
        I(f"buffer_load_dwordx4 {Q(L[j])}, v2, s[16:19], {'0' if j==0 else 's%d'%(24+j)} offen")
    Wv=[k.v1() for _ in range(8)]
    for u4 in range(8):
        so = '0' if u4<4 else 's25'
        I(f"buffer_load_dword v{Wv[u4]}, v3, s[20:23], {so} offen offset:{1024*(u4&3)}")
    tmp=k.v1()
    twE=tw_list(k,cf,6,4,2048,tmp); twO=tw_list(k,cf,7,4,2048,tmp)
    tw512=tw_list(k,cf,1,8,512,tmp); tw64=tw_list(k,cf,5,8,64,tmp)
    I("s_waitcnt vmcnt(8)")
    Xe=[];Xo=[]
    for j in range(4):
        A=L[j];B=L[j]+2
        e=k.cp(); o=k.cp()
        I(f"v_pk_add_f32 {P(e)}, {P(A)}, {P(B)} neg_hi:[0,1]")
        I(f"v_pk_add_f32 {P(o)}, {P(A)}, {P(B)} op_sel:[1,1] op_sel_hi:[0,0] neg_hi:[1,0]")
        Xe.append(e); Xo.append(o)
    Ue=cf.r4(Xe,-1); Uo=cf.r4(Xo,-1)
    for u1 in range(4):
        if u1:
            cf.mul(Ue[u1],twE[u1],conj=True,d=L[u1]); cf.mul(Uo[u1],twO[u1],conj=True,d=L[u1]+2)
        else:
            I(f"v_pk_mov_b32 {P(L[0])}, {P(Ue[0])}, {P(Ue[0])} op_sel:[0,1]"); I(f"v_pk_mov_b32 {P(L[0]+2)}, {P(Uo[0])}, {P(Uo[0])} op_sel:[0,1]")
        I(f"ds_write_b128 v2, {Q(L[u1])} offset:{4096*u1}")
    k.fr(*Ue); k.fr(*Uo)
    I("s_waitcnt lgkmcnt(0)"); I("s_barrier")
    x=[k.cp() for _ in range(8)]
    for a in range(8): I(f"ds_read_b64 {P(x[a])}, v4 offset:{512*a}")
    I("s_waitcnt lgkmcnt(0)")
    y=cf.r8(x,-1)
    for m in range(1,8): cf.mul(y[m],tw512[m],conj=True,d=y[m])
    y=cf.xhi3(y)
    y=cf.r8(y,-1)
    for m in range(1,8): cf.mul(y[m],tw64[m],conj=True,d=y[m])
    y=cf.xlo3(y)
    y=cf.r8(y,-1)
    I("s_waitcnt vmcnt(0)")
    w=k.cp()
    for u4 in range(8):
        I(f"v_lshlrev_b32 v{w}, 16, v{Wv[u4]}"); I(f"v_and_b32 v{w+1}, s15, v{Wv[u4]}")
        cf.scale(w,sc["scale"],d=w)
        cf.mul(y[u4],w,d=y[u4])
    k.fr(w)
    y=cf.r8(y,+1)
    y=cf.xlo3(y)
    for m in range(1,8): cf.mul(y[m],tw64[m],d=y[m])
    y=cf.r8(y,+1)
    y=cf.xhi3(y)
    for m in range(1,8): cf.mul(y[m],tw512[m],d=y[m])
    y=cf.r8(y,+1)
    for a in range(8): I(f"ds_write_b64 v4, {P(y[a])} offset:{512*a}")
    k.fr(*y)
    I("s_waitcnt lgkmcnt(0)"); I("s_barrier")
    for u1 in range(4): I(f"ds_read_b128 {Q(L[u1])}, v2 offset:{4096*u1}")
    I("s_waitcnt lgkmcnt(0)")
    Ue=[];Uo=[]
    for u1 in range(4):
        if u1:
            Ue.append(cf.mul(L[u1],twE[u1])); Uo.append(cf.mul(L[u1]+2,twO[u1]))
        else:
            e=k.cp(); o=k.cp()
            I(f"v_pk_mov_b32 {P(e)}, {P(L[0])}, {P(L[0])} op_sel:[0,1]"); I(f"v_pk_mov_b32 {P(o)}, {P(L[0]+2)}, {P(L[0]+2)} op_sel:[0,1]")
            Ue.append(e); Uo.append(o)
    Ze=cf.r4(Ue,+1); Zo=cf.r4(Uo,+1)
    I("s_cmp_eq_u32 s2, 0"); I("s_cbranch_scc1 L2_special")
    I("s_cmp_eq_u32 s2, 320"); I("s_cbranch_scc1 L2_special")
    for j in range(4):
        I(f"v_pk_add_f32 {P(L[j])}, {P(Ze[j])}, {P(Zo[j])} op_sel:[0,1] op_sel_hi:[1,0] neg_lo:[0,1]")
        I(f"v_pk_add_f32 {P(L[j]+2)}, {P(Ze[j])}, {P(Zo[j])} op_sel:[0,1] op_sel_hi:[1,0] neg_hi:[1,0]")
    I("s_branch L2_store")
    k.label("L2_special")
    for j in range(4):
        I(f"v_mov_b32 v{L[j]}, v{Ze[j]}"); I(f"v_mov_b32 v{L[j]+1}, v{Zo[j]}")
        I(f"v_mov_b32 v{L[j]+2}, v{Ze[j]}"); I(f"v_mov_b32 v{L[j]+3}, v{Zo[j]}")
    k.label("L2_store")
    for j in range(4):
        I(f"buffer_store_dwordx4 {Q(L[j])}, v2, s[16:19], {'0' if j==0 else 's%d'%(24+j)} offen")
    k.label("L2_end")
    I("s_endpgm")
    return k, dict(grid=321,block=256,lds=16384)

def k_rowsinv():
    k=Kern("rowsinv_kernel"); I=k.I
    I("s_cmp_ge_u32 s2, 256"); I("s_cbranch_scc1 L3_end")
    I("s_load_dwordx2 s[4:5], s[0:1], 0"); I("s_load_dwordx2 s[6:7], s[0:1], 96")
    I("s_load_dwordx2 s[8:9], s[0:1], 32"); I("s_load_dwordx2 s[10:11], s[0:1], 80")
    r=rows_addr_setup(k)
    sc,sn=set_consts(k,32,["rsqrt2","c1","c2","s1","s2"])
    cf=CF(k,sc)
    t_soffs(k,48)
    I("s_mov_b32 s15, 0xffff0000"); smask="s15"
    k.setbase(12)
    I("s_waitcnt lgkmcnt(0)")
    srd(k,16,4,SZ_X); srd(k,20,6,6*D*4,WS_MODF); srd(k,24,6,321*16384,WS_T)
    srd(k,56,8,D*2); srd(k,60,10,SZ_X); srd(k,64,6,1024*640*4,WS_X1); srd(k,68,6,8192,WS_KEYS)
    x=[k.cp() for _ in range(8)]
    for k3 in range(8):
        I(f"buffer_load_dwordx2 {P(x[k3])}, v{r['glo'] if k3<4 else r['ghi']}, s[24:27], s{48+k3} offen")
    tmp=k.v1()
    xin=[k.cp() for _ in range(10)]
    mv={n:[k.v1() for _ in range(10)] for n in ("ga","sb","c1","gb","wr")}
    vo=k.v1(); vo4=k.v1()
    I(f"v_lshlrev_b32 v{vo}, 1, v1"); I(f"v_lshlrev_b32 v{vo4}, 2, v1")
    I("s_lshl_b32 s14, s2, 2"); I("s_add_u32 s14, s14, s3"); I("s_mul_i32 s13, s14, 2560")
    I("s_lshl_b32 s12, s14, 1")
    I("s_cmp_ge_u32 s3, 4"); I("s_cbranch_scc1 L3_noload")
    for j in range(10):
        I(f"v_mov_b32 v{xin[j]}, 0"); I(f"v_mov_b32 v{xin[j]+1}, 0"); I(f"v_mov_b32 v{mv['wr'][j]}, 0")
    for j in range(10):
        I(f"buffer_load_short_d16_hi v{xin[j]}, v{vo}, s[16:19], s13 offen offset:{128*j}")
        I(f"buffer_load_short_d16_hi v{xin[j]+1}, v{vo}, s[16:19], s13 offen offset:{1280+128*j}")
    for n,slot in (("ga",2),("sb",3),("c1",4),("gb",5)):
        I(f"s_movk_i32 s14, {2560*slot}")
        for j in range(10):
            I(f"buffer_load_dword v{mv[n][j]}, v{vo4}, s[20:23], s14 offen offset:{256*j}")
    for j in range(10):
        I(f"buffer_load_short_d16_hi v{mv['wr'][j]}, v{vo}, s[56:59], 0 offen offset:{128*j}")
    k.label("L3_noload")
    tw64=tw_list(k,cf,r["b"],8,64,tmp)
    tw640=tw_list(k,cf,r["lane"],10,640,tmp)
    I("s_cmp_ge_u32 s3, 4"); I("s_cbranch_scc1 L3_w4")
    I("s_waitcnt vmcnt(63)");
    I("s_waitcnt vmcnt(60)")
    I("s_branch L3_go")
    k.label("L3_w4")
    I("s_waitcnt vmcnt(0)")
    k.label("L3_go")
    y=cf.r8(x,+1)
    y=cf.xhi3(y)
    for m in range(1,8): cf.mul(y[m],tw64[m],d=y[m])
    y=cf.r8(y,+1)
    for a in range(8): I(f"ds_write_b64 v{r['lds2']}, {P(y[a])} offset:{64*a}")
    k.fr(*y); k.fr(*tw64[1:])
    I("s_waitcnt lgkmcnt(0)"); I("s_barrier")
    I("s_cmp_ge_u32 s3, 4"); I("s_cbranch_scc1 L3_end")
    z=[k.cp() for _ in range(10)]
    for k1 in range(10): I(f"ds_read_b64 {P(z[k1])}, v{r['lds1']} offset:{k1*4*LDS_ROW}")
    I("s_waitcnt lgkmcnt(0)")
    for k1 in range(1,10): cf.mul(z[k1],tw640[k1],d=z[k1])
    k.fr(*tw640[1:])
    y=cf.r10(z,+1)
    I("s_waitcnt vmcnt(0)")
    pk=k.v1()
    for j in range(10):
        bfr2(k,y[j],tmp,smask)
        I(f"v_mul_f32 v{y[j]}, v{y[j]}, v{mv['ga'][j]}"); I(f"v_mul_f32 v{y[j]+1}, v{y[j]+1}, v{mv['ga'][j]}")
        bfr2(k,y[j],tmp,smask)
        cf.add(y[j],xin[j],d=y[j])
        bfr2(k,y[j],mv['ga'][j],smask)
        I(f"buffer_store_dword v{mv['ga'][j]}, v{vo4}, s[64:67], s13 offen offset:{256*j}")
    x1=y
    sinv=k.cp(); I(f"v_mov_b32 v{sinv}, {fhex(1.0/640)}"); I(f"v_mov_b32 v{sinv+1}, {fhex(1.0/640)}")
    mean,sd,rc=ln_stats(k,cf,x1,smask,28,30,sinv)
    q=k.cp(); racc=k.cp()
    for j in range(10):
        h=ln_apply(k,cf,x1[j],mean,sd,rc,mv['c1'][j],mv['sb'][j],smask,tmp,q,out=xin[j])
        w=mv['wr'][j]
        if j==0:
            I(f"v_mul_f32 v{racc}, v{h}, v{w}"); I(f"v_mul_f32 v{racc+1}, v{h+1}, v{w}")
        else:
            I(f"v_fmac_f32 v{racc}, v{h}, v{w}"); I(f"v_fmac_f32 v{racc+1}, v{h+1}, v{w}")
        g=mv['gb'][j]
        I(f"v_mul_f32 v{h}, v{h}, v{g}"); I(f"v_mul_f32 v{h+1}, v{h+1}, v{g}")
        bfr2(k,h,tmp,smask)
        cf.add(h,x1[j],d=h)
        I(f"v_cvt_pk_bf16_f32 v{g}, v{h}, v{h+1}")
        I(f"buffer_store_short v{g}, v{vo}, s[60:63], s13 offen offset:{128*j}")
        I(f"buffer_store_short_d16_hi v{g}, v{vo}, s[60:63], s13 offen offset:{1280+128*j}")
    wave_sum2(k,racc,q,28)
    I(f"v_mov_b32 v{racc}, s28"); I(f"v_mov_b32 v{racc+1}, s29")
    I(f"v_cmp_eq_u32 vcc, 1, v1"); I(f"v_cndmask_b32 v{racc}, v{racc}, v{racc+1}, vcc")
    I(f"v_cvt_pk_bf16_f32 v{q}, v{racc}, v{racc}"); I(f"v_and_b32 v{q}, s15, v{q}")
    I(f"v_ashrrev_i32 v{q+1}, 31, v{q}"); I(f"v_or_b32 v{q+1}, 0x80000000, v{q+1}")
    I(f"v_xor_b32 v{q}, v{q}, v{q+1}"); I(f"v_and_b32 v{q}, s15, v{q}")
    I(f"v_add_u32 v{racc}, s12, v1")
    I(f"v_sub_u32 v{racc+1}, 2047, v{racc}"); I(f"v_or_b32 v{q}, v{q}, v{racc+1}")
    I(f"v_lshlrev_b32 v{racc}, 2, v{racc}")
    I("v_cmp_gt_u32 vcc, 2, v1"); I("s_and_saveexec_b64 s[28:29], vcc")
    I(f"buffer_store_dword v{q}, v{racc}, s[68:71], 0 offen")
    k.label("L3_end")
    I("s_endpgm")
    return k, dict(grid=256,block=320,lds=40*LDS_ROW)

def more():
    ks=[k_cols(),k_rowsinv()]
    try:
        from gen3 import more3
        ks+=more3()
    except ImportError: pass
    return ks
```

```python
from gen import *

F=1728
def ce(k,a,b,t):
    k.I(f"v_max_u32 v{t}, v{a}, v{b}"); k.I(f"v_min_u32 v{b}, v{a}, v{b}")
    return t,b,a
def bitonic8(k,c,t):
    for d in (4,2,1):
        for i in range(8):
            if not i&d:
                c[i],c[i+d],t=ce(k,c[i],c[i+d],t)
    return c,t
def merge_level(k,a,spare,t,ctl,rm="0xf"):
    for i in range(8):
        k.I(f"v_max_u32_dpp v{spare[i]}, v{a[7-i]}, v{a[i]} {ctl} row_mask:{rm} bank_mask:0xf")
    c,t=bitonic8(k,list(spare),t)
    return c,list(a),t

HROW=1312; AROW=96
L_H=0; L_TOP=8*HROW; L_PART=L_TOP+256; L_ACT=L_PART+10*2048; L_END=L_ACT+8*AROW
SEL_IDX=0; SEL_SIG=32; SEL_H2=256; SEL_X1=256+8*640*4

def k_moe():
    k=Kern("moe_kernel"); I=k.I
    I("s_cmp_ge_u32 s2, 54"); I("s_cbranch_scc1 L4_end")
    I("s_load_dwordx4 s[4:7], s[0:1], 40")
    I("s_load_dwordx2 s[8:9], s[0:1], 56")
    I("s_load_dwordx2 s[10:11], s[0:1], 96")
    I("v_lshrrev_b32 v1, 6, v0"); I("v_readfirstlane_b32 s3, v1")
    I("v_and_b32 v1, 63, v0")
    I("v_and_b32 v2, 15, v0")
    I("v_bfe_u32 v3, v0, 4, 2")
    I("s_mov_b32 s15, 0xffff0000"); smask="s15"
    I("s_lshl_b32 s14, s3, 6"); I("v_lshl_add_u32 v4, v3, 2, s14"); I("s_movk_i32 s14, 3456"); I("v_mul_lo_u32 v4, v4, s14")
    I("v_lshl_add_u32 v4, v2, 2, v4"); I("s_lshl_b32 s14, s2, 6"); I("v_add_u32 v4, s14, v4")
    I("s_lshl_b32 s14, s2, 5"); I("v_lshl_add_u32 v5, v3, 2, s14"); I("v_mul_u32_u24 v5, 1280, v5")
    I("v_lshl_add_u32 v5, v2, 2, v5"); I("s_lshl_b32 s14, s3, 7"); I("v_add_u32 v5, s14, v5")
    for t in range(16): I(f"s_mov_b32 s{64+t}, {(16*(t>>2)+(t&3))*3456}")
    for t in range(8): I(f"s_mov_b32 s{80+t}, {(16*(t>>2)+(t&3))*1280}")
    I("v_lshlrev_b32 v6, 4, v0")
    I("v_lshlrev_b32 v7, 2, v1")
    I("s_waitcnt lgkmcnt(0)")
    srd(k,16,4,D*F*2); srd(k,20,6,D*F*2); srd(k,24,8,F*D*2)
    srd(k,28,10,8192,WS_KEYS); srd(k,32,10,6*D*4,WS_MODF); srd(k,36,10,1024*640*4,WS_X1)
    srd(k,40,10,0x18000,WS_SEL); srd(k,44,10,54*20480,WS_PART)
    k.setbase(8)
    key=k.vn(4)
    I(f"buffer_load_dwordx4 {Q(key)}, v6, s[28:31], 0 offen")
    c1=[k.v1() for _ in range(10)]; sh=[k.v1() for _ in range(10)]
    I("s_movk_i32 s14, 7680")
    for j in range(10): I(f"buffer_load_dword v{sh[j]}, v7, s[32:35], s14 offen offset:{256*j}")
    I("s_movk_i32 s14, 10240")
    for j in range(10): I(f"buffer_load_dword v{c1[j]}, v7, s[32:35], s14 offen offset:{256*j}")
    Bg=[k.vn(4) for _ in range(4)]; Bu=[k.vn(4) for _ in range(4)]
    for ks in range(4):
        for r in range(4):
            I(f"buffer_load_dword v{Bg[ks]+r}, v4, s[16:19], s{64+4*ks+r} offen")
            I(f"buffer_load_dword v{Bu[ks]+r}, v4, s[20:23], s{64+4*ks+r} offen")
    Bd=[[k.vn(4) for _ in range(2)] for _ in range(2)]
    for b in range(2):
        for ks in range(2):
            for r in range(4):
                I(f"buffer_load_dword v{Bd[b][ks]+r}, v5, s[24:27], s{80+4*ks+r} offen offset:{64*b}")
    mark=k.nextv
    A=[k.v1() for _ in range(8)]; B=[k.v1() for _ in range(8)]; t=k.v1()
    I("s_waitcnt vmcnt(48)")
    a=[key,key+1,key+2,key+3]
    for (x,y) in ((0,1),(2,3),(0,2),(1,3),(1,2)):
        a[x],a[y],t=ce(k,a[x],a[y],t)
    c=[A[0],A[1],A[2],A[3],A[4],A[5],A[6],A[7]]
    for i in range(4): I(f"v_mov_b32 v{c[i]}, v{a[i]}")
    for i in range(4): I(f"v_mov_b32_dpp v{c[4+i]}, v{a[3-i]} quad_perm:[1,0,3,2] row_mask:0xf bank_mask:0xf")
    t2=k.v1()
    c,t2=bitonic8(k,c,t2)
    sp=[r for r in B]
    for ctl,rm in (("quad_perm:[2,3,0,1]","0xf"),("row_ror:4","0xf"),("row_ror:8","0xf"),("row_bcast:15","0xa"),("row_bcast:31","0xc")):
        c,sp,t2=merge_level(k,c,sp,t2,ctl,rm)
    st=k.vn(8,4)
    for i in range(8): I(f"v_mov_b32 v{st+i}, v{c[i]}")
    I("s_lshl_b32 s14, s3, 5"); I(f"v_mov_b32 v{t}, s14")
    I("s_cmp_ge_u32 s3, 8"); I("s_cbranch_scc1 L4_nowr")
    I("v_cmp_eq_u32 vcc, 63, v1"); I("s_and_saveexec_b64 s[48:49], vcc")
    I(f"ds_write_b128 v{t}, {Q(st)} offset:{L_TOP}"); I(f"ds_write_b128 v{t}, {Q(st+4)} offset:{L_TOP+16}")
    I("s_mov_b64 exec, s[48:49]")
    k.label("L4_nowr")
    I("s_waitcnt lgkmcnt(0)"); I("s_barrier")
    I(f"v_and_b32 v{t}, 7, v0"); I(f"v_lshlrev_b32 v{t}, 5, v{t}")
    I(f"ds_read_b128 {Q(st)}, v{t} offset:{L_TOP}"); I(f"ds_read_b128 {Q(st+4)}, v{t} offset:{L_TOP+16}")
    I("s_waitcnt lgkmcnt(0)")
    c=[st+i for i in range(8)]; sp=list(A)
    tt=B[0]
    for ctl in ("quad_perm:[1,0,3,2]","quad_perm:[2,3,0,1]","row_ror:4"):
        c,sp,tt=merge_level(k,c,sp,tt,ctl)
    for i in range(8): I(f"v_readfirstlane_b32 s{50+i}, v{c[i]}")
    I("s_cmp_ge_u32 s3, 8"); I("s_cbranch_scc1 L4_afterln")
    I("s_mov_b32 s58, s50")
    for i in range(1,8):
        I(f"s_cmp_eq_u32 s3, {i}"); I(f"s_cselect_b32 s58, s{50+i}, s58")
    I("s_and_b32 s59, s58, 0x7ff"); I("s_sub_u32 s59, 2047, s59")
    I("s_lshr_b32 s60, s59, 1"); I("s_mul_i32 s60, s60, 2560")
    I("s_and_b32 s61, s59, 1"); I("s_lshl_b32 s61, s61, 4")
    k.setbase(mark)
    z=[k.cp() for _ in range(10)]
    for j in range(10): I(f"buffer_load_dword v{z[j]+1}, v7, s[36:39], s60 offen offset:{256*j}")
    cf=CF(k,{})
    sinv=k.cp(); I(f"v_mov_b32 v{sinv}, {fhex(1.0/640)}"); I(f"v_mov_b32 v{sinv+1}, {fhex(1.0/640)}")
    hadr=k.v1(); I(f"s_mul_i32 s14, s3, {HROW}"); I(f"v_lshlrev_b32 v{hadr}, 1, v1"); I(f"v_add_u32 v{hadr}, s14, v{hadr}")
    I("s_waitcnt vmcnt(0)")
    for j in range(10):
        I(f"v_lshlrev_b32 v{z[j]}, 16, v{z[j]+1}"); I(f"v_and_b32 v{z[j]+1}, s15, v{z[j]+1}")
    mean,sd,rc=ln_stats(k,cf,z,smask,48,62,sinv)
    q=k.cp(); h=k.cp(); tmp=k.v1()
    I("s_mul_i32 s14, s3, 2560")
    I(f"s_add_u32 s62, s14, {SEL_H2}"); I(f"s_add_u32 s63, s14, {SEL_X1}")
    I("s_cmp_eq_u32 s61, 0"); I("s_cselect_b64 vcc, -1, 0")
    for j in range(10):
        ln_apply(k,cf,z[j],mean,sd,rc,c1[j],sh[j],smask,tmp,q,out=h)
        I(f"v_lshrrev_b32 v{tmp}, s61, v{tmp}")
        I(f"ds_write_b16 v{hadr}, v{tmp} offset:{128*j}")
        I(f"v_cndmask_b32 v{c1[j]}, v{h+1}, v{h}, vcc"); I(f"v_cndmask_b32 v{sh[j]}, v{z[j]+1}, v{z[j]}, vcc")
    I("s_cmp_lg_u32 s2, 0"); I("s_cbranch_scc1 L4_afterln")
    for j in range(10):
        I(f"buffer_store_dword v{c1[j]}, v7, s[40:43], s62 offen offset:{256*j}")
        I(f"buffer_store_dword v{sh[j]}, v7, s[40:43], s63 offen offset:{256*j}")
    I("s_and_b32 s14, s58, 0xffff0000")
    I(f"v_mov_b32 v{q}, s14")
    I(f"v_ashrrev_i32 v{q+1}, 31, v{q}"); I(f"v_not_b32 v{q+1}, v{q+1}"); I(f"v_or_b32 v{q+1}, 0x80000000, v{q+1}")
    I(f"v_xor_b32 v{q}, v{q}, v{q+1}"); I(f"v_and_b32 v{q}, s15, v{q}")
    I(f"v_mul_f32 v{q}, 0xbfb8aa3b, v{q}"); I(f"v_exp_f32 v{q}, v{q}"); I(f"v_add_f32 v{q}, 1.0, v{q}"); I(f"v_rcp_f32 v{q}, v{q}")
    bfr1(k,q,tmp)
    I(f"v_mov_b32 v{q+1}, s59"); I("s_lshl_b32 s14, s3, 2"); I(f"v_mov_b32 v{tmp}, s14")
    I("v_cmp_eq_u32 vcc, 0, v1"); I("s_and_saveexec_b64 s[48:49], vcc")
    I(f"buffer_store_dword v{q+1}, v{tmp}, s[40:43], 0 offen offset:{SEL_IDX}")
    I(f"buffer_store_dword v{q}, v{tmp}, s[40:43], 0 offen offset:{SEL_SIG}")
    I("s_mov_b64 exec, s[48:49]")
    k.label("L4_afterln")
    k.setbase(mark)
    s0=k.v1(); s1=k.v1(); ad=k.v1()
    I("v_cmp_gt_u32 vcc, 8, v2")
    I(f"v_mov_b32 v{s0}, 0x01000c0c"); I(f"v_mov_b32 v{ad}, 0x0c0c0100"); I(f"v_cndmask_b32 v{s0}, v{s0}, v{ad}, vcc")
    I(f"v_mov_b32 v{s1}, 0x03020c0c"); I(f"v_mov_b32 v{ad}, 0x0c0c0302"); I(f"v_cndmask_b32 v{s1}, v{s1}, v{ad}, vcc")
    I(f"v_and_b32 v{ad}, 7, v0"); I(f"v_mul_u32_u24 v{ad}, {HROW}, v{ad}"); I(f"v_lshl_add_u32 v{ad}, v3, 3, v{ad}")
    I("s_lshl_b32 s14, s3, 7"); I(f"v_add_u32 v{ad}, s14, v{ad}")
    accG=k.vn(4); accU=k.vn(4)
    for r in range(4): I(f"v_mov_b32 v{accG+r}, 0"); I(f"v_mov_b32 v{accU+r}, 0")
    I("s_waitcnt lgkmcnt(0)"); I("s_barrier")
    raw=[k.vn(2) for _ in range(4)]
    for ks in range(4): I(f"ds_read_b64 {P(raw[ks])}, v{ad} offset:{32*ks}")
    Aop=[k.vn(4) for _ in range(4)]
    I("s_waitcnt lgkmcnt(0)")
    for ks in range(4):
        for r in range(4):
            I(f"v_perm_b32 v{Aop[ks]+r}, v{raw[ks]+(r>>1)}, v{raw[ks]+(r>>1)}, v{s1 if r&1 else s0}")
    I("s_waitcnt vmcnt(0)")
    for ks in range(4):
        I(f"v_mfma_f32_16x16x32_bf16 {Q(accG)}, {Q(Aop[ks])}, {Q(Bg[ks])}, {Q(accG)}")
        I(f"v_mfma_f32_16x16x32_bf16 {Q(accU)}, {Q(Aop[ks])}, {Q(Bu[ks])}, {Q(accU)}")
    pa=k.v1(); I("s_lshl_b32 s14, s3, 11"); I(f"v_add_u32 v{pa}, s14, v7")
    for r in range(4):
        I(f"ds_write_b32 v{pa}, v{accG+r} offset:{L_PART+256*r}"); I(f"ds_write_b32 v{pa}, v{accU+r} offset:{L_PART+1024+256*r}")
    I("s_waitcnt lgkmcnt(0)"); I("s_barrier")
    I("s_cmp_ge_u32 s3, 4"); I("s_cbranch_scc1 L4_noact")
    I("s_lshl_b32 s14, s3, 8"); I(f"v_add_u32 v{pa}, s14, v7")
    G=[Aop[0]+i for i in range(10)]; U=[raw[0]+i for i in range(8)]+[accG,accG+1]
    for w in range(10):
        I(f"ds_read_b32 v{G[w]}, v{pa} offset:{L_PART+2048*w}"); I(f"ds_read_b32 v{U[w]}, v{pa} offset:{L_PART+2048*w+1024}")
    I("s_waitcnt lgkmcnt(0)")
    for w in range(1,10):
        I(f"v_add_f32 v{G[0]}, v{G[0]}, v{G[w]}"); I(f"v_add_f32 v{U[0]}, v{U[0]}, v{U[w]}")
    g=G[0]; u=U[0]; tm=G[1]; e=G[2]
    bfr1(k,g,tm); bfr1(k,u,tm)
    I(f"v_mul_f32 v{e}, 0xbfb8aa3b, v{g}"); I(f"v_exp_f32 v{e}, v{e}"); I(f"v_add_f32 v{e}, 1.0, v{e}"); I(f"v_rcp_f32 v{e}, v{e}")
    I(f"v_mul_f32 v{g}, v{g}, v{e}"); bfr1(k,g,tm)
    I(f"v_mul_f32 v{g}, v{g}, v{u}"); I(f"v_cvt_pk_bf16_f32 v{g}, v{g}, v{g}")
    I(f"v_lshl_add_u32 v{e}, v3, 2, s3"); I(f"v_and_b32 v{tm}, 7, v{e}"); I(f"v_mul_u32_u24 v{tm}, {AROW}, v{tm}")
    I(f"v_lshrrev_b32 v{e}, 3, v{e}"); I(f"v_lshl_add_u32 v{e}, v2, 1, v{e}"); I(f"v_lshl_add_u32 v{tm}, v{e}, 1, v{tm}")
    I(f"ds_write_b16 v{tm}, v{g} offset:{L_ACT}")
    k.label("L4_noact")
    I(f"v_and_b32 v{ad}, 7, v0"); I(f"v_mul_u32_u24 v{ad}, {AROW}, v{ad}"); I(f"v_lshl_add_u32 v{ad}, v3, 3, v{ad}")
    I("s_waitcnt lgkmcnt(0)"); I("s_barrier")
    for ks in range(2): I(f"ds_read_b64 {P(raw[ks])}, v{ad} offset:{L_ACT+32*ks}")
    acc=[accG,accU]
    for b in range(2):
        for r in range(4): I(f"v_mov_b32 v{acc[b]+r}, 0")
    I("s_waitcnt lgkmcnt(0)")
    for ks in range(2):
        for r in range(4):
            I(f"v_perm_b32 v{Aop[ks]+r}, v{raw[ks]+(r>>1)}, v{raw[ks]+(r>>1)}, v{s1 if r&1 else s0}")
    for ks in range(2):
        for b in range(2):
            I(f"v_mfma_f32_16x16x32_bf16 {Q(acc[b])}, {Q(Aop[ks])}, {Q(Bd[b][ks])}, {Q(acc[b])}")
    I("s_mul_i32 s14, s2, 20480"); I("s_lshl_b32 s13, s3, 11"); I("s_add_u32 s14, s14, s13")
    for b in range(2):
        for r in range(4):
            I(f"buffer_store_dword v{acc[b]+r}, v7, s[44:47], s14 offen offset:{1024*b+256*r}")
    k.label("L4_end")
    I("s_endpgm")
    return k, dict(grid=54,block=640,lds=L_END)

def k_final():
    k=Kern("final_kernel"); I=k.I
    I("s_cmp_ge_u32 s2, 20"); I("s_cbranch_scc1 L5_end")
    I("s_load_dwordx2 s[4:5], s[0:1], 80"); I("s_load_dwordx2 s[6:7], s[0:1], 96")
    I("v_lshrrev_b32 v1, 6, v0")
    I("v_bfe_u32 v2, v0, 4, 2")
    I("v_lshl_add_u32 v3, v2, 2, v1"); I("v_and_b32 v3, 7, v3")
    I("v_and_b32 v4, 15, v0"); I("v_lshlrev_b32 v4, 1, v4"); I("v_bfe_u32 v5, v0, 5, 1"); I("v_add_u32 v4, v4, v5")
    I("s_lshl_b32 s14, s2, 5"); I("v_add_u32 v4, s14, v4")
    I("v_lshlrev_b32 v5, 2, v0"); I("s_lshl_b32 s14, s2, 10"); I("v_add_u32 v5, s14, v5")
    I("v_lshlrev_b32 v6, 2, v3")
    I("v_mul_u32_u24 v7, 640, v3"); I("v_add_u32 v7, v7, v4"); I("v_lshlrev_b32 v7, 2, v7")
    I("v_lshlrev_b32 v8, 2, v4")
    I("s_mov_b32 s15, 0xffff0000")
    I("s_waitcnt lgkmcnt(0)")
    srd(k,16,4,SZ_X); srd(k,20,6,6*D*4,WS_MODF); srd(k,24,6,0x18000,WS_SEL); srd(k,28,6,54*20480,WS_PART)
    I(f"buffer_load_dword v10, v6, s[24:27], 0 offen offset:{SEL_IDX}")
    I(f"buffer_load_dword v11, v6, s[24:27], 0 offen offset:{SEL_SIG}")
    I(f"buffer_load_dword v12, v7, s[24:27], 0 offen offset:{SEL_H2}")
    I(f"s_mov_b32 s14, {SEL_X1}"); I("buffer_load_dword v13, v7, s[24:27], s14 offen")
    I("s_movk_i32 s14, 12800"); I("buffer_load_dword v14, v8, s[20:23], s14 offen")
    for g in range(54):
        I(f"s_mov_b32 s{32+g}, {20480*g}")
    for g in range(54):
        I(f"buffer_load_dword v{16+g}, v5, s[28:31], s{32+g} offen")
    for g in range(54):
        if g%9==0: I(f"s_waitcnt vmcnt({54-g-9})")
        if g>=2: I(f"v_add_f32 v{16+(g&1)}, v{16+(g&1)}, v{16+g}")
    I("v_add_f32 v16, v16, v17")
    bfr1(k,16,9)
    I("v_mul_f32 v16, v16, v11"); bfr1(k,16,9)
    I("v_add_f32 v16, v16, v12"); bfr1(k,16,9)
    I("v_mul_f32 v16, v16, v14"); bfr1(k,16,9)
    I("v_add_f32 v16, v16, v13"); I("v_cvt_pk_bf16_f32 v16, v16, v16")
    I("v_mul_u32_u24 v10, 640, v10"); I("v_add_u32 v10, v10, v4"); I("v_lshlrev_b32 v10, 1, v10")
    I("buffer_store_short v16, v10, s[16:19], 0 offen")
    k.label("L5_end")
    I("s_endpgm")
    return k, dict(grid=20,block=256,lds=0)

def more3():
    return [k_moe(),k_final()]
```

```python
import math, sys
from asmlib import *
from fftlib import *

NAME="adaLN_cond__spectral_gfnet__moe_arch_mod__prompt"
WS_MODF=0
WS_KEYS=0x4000
WS_SEL=0x8000
WS_WT=0x20000
WS_T=0x300000
WS_X1=0x900000
WS_PART=0xC00000
S=2048; D=640
SZ_X=S*D*2

def srd(k,r,base,size,off=0):
    if off:
        k.I(f"s_add_u32 s{r}, s{base}, 0x{off:x}"); k.I(f"s_addc_u32 s{r+1}, s{base+1}, 0")
    else:
        k.I(f"s_mov_b32 s{r}, s{base}"); k.I(f"s_mov_b32 s{r+1}, s{base+1}")
    k.I(f"s_mov_b32 s{r+2}, 0x{size:x}"); k.I(f"s_mov_b32 s{r+3}, 0x00020000")

def bfr1(k,v,t):
    k.I(f"v_cvt_pk_bf16_f32 v{t}, v{v}, v{v}"); k.I(f"v_lshlrev_b32 v{v}, 16, v{t}")
def bfr2(k,p,t,smask):
    k.I(f"v_cvt_pk_bf16_f32 v{t}, v{p}, v{p+1}")
    k.I(f"v_lshlrev_b32 v{p}, 16, v{t}"); k.I(f"v_and_b32 v{p+1}, {smask}, v{t}")

def k_prep():
    k=Kern("prep_kernel")
    I=k.I
    I("s_cmp_ge_u32 s2, 248"); I("s_cbranch_scc1 L0_end")
    I("s_load_dwordx4 s[4:7], s[0:1], 8")
    I("s_load_dwordx4 s[8:11], s[0:1], 64")
    I("s_load_dwordx2 s[12:13], s[0:1], 96")
    I("s_cmp_lt_u32 s2, 120"); I("s_cbranch_scc1 L0_mod")
    I("s_sub_u32 s3, s2, 120")
    I("v_lshlrev_b32 v1, 1, v0")
    I("v_lshlrev_b32 v2, 13, v0")
    I("s_lshl_b32 s14, s3, 6"); I("v_add_u32 v2, s14, v2")
    I("s_lshr_b32 s14, s3, 4"); I("s_lshl_b32 s14, s14, 8")
    I("s_lshr_b32 s15, s3, 2"); I("s_and_b32 s15, s15, 3")
    I("s_add_u32 s14, s14, s15")
    I("s_and_b32 s15, s3, 3"); I("s_lshl_b32 s15, s15, 3"); I("s_add_u32 s14, s14, s15")
    I("s_mul_i32 s14, s14, 642")
    I("s_waitcnt lgkmcnt(0)")
    srd(k,16,4,S*321*2); srd(k,20,6,S*321*2); srd(k,24,12,321*8192,WS_WT)
    for i in range(16):
        off=(4*(i>>3)+32*(i&7))*642
        I(f"s_add_u32 s{32+i}, s14, {off}")
    for i in range(16): I(f"v_mov_b32 v{32+i}, 0")
    for i in range(16):
        I(f"buffer_load_ushort v{16+i}, v1, s[16:19], s{32+i} offen")
        I(f"buffer_load_short_d16_hi v{32+i}, v1, s[20:23], s{32+i} offen")
    I("s_waitcnt vmcnt(0)")
    for i in range(16): I(f"v_or_b32 v{16+i}, v{16+i}, v{32+i}")
    for q in range(4):
        I(f"buffer_store_dwordx4 {Q(16+4*q)}, v2, s[24:27], 0 offen offset:{16*q}")
    I("s_endpgm")
    k.label("L0_mod")
    I("v_cmp_gt_u32 vcc, 256, v0"); I("s_cbranch_vccz L0_end")
    I("v_and_b32 v1, 3, v0")
    I("v_lshrrev_b32 v2, 2, v0")
    I("v_lshlrev_b32 v3, 1, v2")
    I("s_mov_b32 s14, 7680"); I("v_mul_lo_u32 v4, v2, s14")
    I("v_lshl_add_u32 v4, v1, 4, v4")
    I("s_lshl_b32 s14, s2, 6"); I("v_add_u32 v4, s14, v4")
    for i in range(10): I(f"v_mov_b32 v{10+i}, 0")
    I("s_waitcnt lgkmcnt(0)")
    srd(k,16,8,D*2); srd(k,20,10,D*3840*2); srd(k,24,12,6*D*4,WS_MODF)
    for i in range(10): I(f"buffer_load_short_d16_hi v{10+i}, v3, s[16:19], 0 offen offset:{128*i}")
    for i in range(10):
        I(f"s_mov_b32 s{32+i}, {491520*i}")
    for i in range(10):
        I(f"buffer_load_dwordx4 {Q(24+4*i)}, v4, s[20:23], s{32+i} offen")
    I("s_mov_b32 s14, 0xbfb8aa3b")
    I("s_mov_b32 s15, 0xffff0000")
    I("s_waitcnt vmcnt(10)")
    for i in range(10):
        c=10+i
        I(f"v_mul_f32 v5, s14, v{c}"); I("v_exp_f32 v5, v5"); I("v_add_f32 v5, 1.0, v5"); I("v_rcp_f32 v5, v5")
        I(f"v_mul_f32 v{c}, v{c}, v5"); bfr1(k,c,5)
    for j in range(8): I(f"v_mov_b32 v{64+j}, 0")
    for i in range(10):
        I(f"s_waitcnt vmcnt({9-i})")
        for q in range(4):
            w=24+4*i+q
            I(f"v_lshlrev_b32 v6, 16, v{w}"); I(f"v_and_b32 v7, s15, v{w}")
            I(f"v_fmac_f32 v{64+2*q}, v{10+i}, v6"); I(f"v_fmac_f32 v{65+2*q}, v{10+i}, v7")
    for j in range(4):
        I(f"v_permlane32_swap_b32 v{64+2*j}, v{65+2*j}")
    for j in range(4):
        I(f"v_add_f32 v{72+j}, v{64+2*j}, v{65+2*j}")
    for j in range(2):
        I(f"v_permlane16_swap_b32 v{72+2*j}, v{73+2*j}")
    for j in range(2):
        I(f"v_add_f32 v{76+j}, v{72+2*j}, v{73+2*j}")
    for ror in (8,4):
        for j in range(2):
            I(f"v_add_f32_dpp v{76+j}, v{76+j}, v{76+j} row_ror:{ror} row_mask:0xf bank_mask:0xf")
    I("v_lshrrev_b32 v5, 4, v0"); I("v_and_b32 v6, 1, v5"); I("v_lshlrev_b32 v6, 1, v6")
    I("v_bfe_u32 v7, v5, 1, 1"); I("v_or_b32 v6, v6, v7")
    I("v_lshl_add_u32 v6, v1, 3, v6"); I("v_lshlrev_b32 v6, 2, v6")
    I("v_lshrrev_b32 v7, 6, v0"); I("v_lshl_add_u32 v6, v7, 7, v6")
    I("ds_write_b32 v6, v76"); I("ds_write_b32 v6, v77 offset:16")
    I("s_waitcnt lgkmcnt(0)"); I("s_barrier")
    I("v_cmp_gt_u32 vcc, 32, v0"); I("s_and_saveexec_b64 s[28:29], vcc"); I("s_cbranch_execz L0_end")
    I("v_lshlrev_b32 v6, 2, v0")
    for w in range(4): I(f"ds_read_b32 v{8+w}, v6 offset:{128*w}")
    I("s_waitcnt lgkmcnt(0)")
    I("v_add_f32 v8, v8, v9"); I("v_add_f32 v10, v10, v11"); I("v_add_f32 v8, v8, v10")
    bfr1(k,8,5)
    I("s_mov_b32 s14, 0")
    I("s_cmp_ge_u32 s2, 20"); I("s_cselect_b32 s14, 1.0, s14")
    I("s_cmp_ge_u32 s2, 40"); I("s_cselect_b32 s14, 0, s14")
    I("s_cmp_ge_u32 s2, 80"); I("s_cselect_b32 s14, 1.0, s14")
    I("s_cmp_ge_u32 s2, 100"); I("s_cselect_b32 s14, 0, s14")
    I("v_add_f32 v8, s14, v8"); bfr1(k,8,5)
    I("s_lshl_b32 s14, s2, 7"); I("v_add_u32 v6, s14, v6")
    I("buffer_store_dword v8, v6, s[24:27], 0 offen")
    k.label("L0_end")
    I("s_endpgm")
    return k, dict(grid=248,block=384,lds=512)

def wave_sum2(k,p,t,sd):
    I=k.I
    I(f"v_permlane32_swap_b32 v{p}, v{p+1}")
    I(f"v_add_f32 v{p}, v{p}, v{p+1}")
    I(f"v_mov_b32 v{t}, v{p}")
    I(f"v_permlane16_swap_b32 v{p}, v{t}")
    I(f"v_add_f32 v{p}, v{p}, v{t}")
    for ror in (8,4,2,1):
        I(f"v_add_f32_dpp v{p}, v{p}, v{p} row_ror:{ror} row_mask:0xf bank_mask:0xf")
    I(f"v_readlane_b32 s{sd}, v{p}, 0"); I(f"v_readlane_b32 s{sd+1}, v{p}, 32")

def ln_stats(k,cf,z,smask,sA,sB,sinv):
    I=k.I
    acc=cf.add(z[0],z[1])
    for j in range(2,10): cf.add(acc,z[j],d=acc)
    t=k.cp()
    wave_sum2(k,acc,t,sA)
    mean=k.cp()
    I(f"v_pk_mul_f32 {P(mean)}, {SP(sA)}, {P(sinv)}")
    d=k.cp()
    for j in range(10):
        cf.sub(z[j],mean,d=d)
        if j==0: I(f"v_pk_mul_f32 {P(acc)}, {P(d)}, {P(d)}")
        else: I(f"v_pk_fma_f32 {P(acc)}, {P(d)}, {P(d)}, {P(acc)}")
    wave_sum2(k,acc,t,sB)
    var=d
    I(f"v_pk_mul_f32 {P(var)}, {SP(sB)}, {P(sinv)}")
    bfr2(k,mean,t,smask); bfr2(k,var,t,smask)
    I(f"v_add_f32 v{var}, 0x3727c5ac, v{var}"); I(f"v_add_f32 v{var+1}, 0x3727c5ac, v{var+1}")
    bfr2(k,var,t,smask)
    I(f"v_sqrt_f32 v{var}, v{var}"); I(f"v_sqrt_f32 v{var+1}, v{var+1}")
    bfr2(k,var,t,smask)
    rc=acc
    I(f"v_rcp_f32 v{rc}, v{var}"); I(f"v_rcp_f32 v{rc+1}, v{var+1}")
    k.fr(t)
    return mean,var,rc

def ln_apply(k,cf,zj,mean,sd,rc,c1,sh,smask,t,q,out=None):
    I=k.I
    o=zj if out is None else out
    cf.sub(zj,mean,d=o); bfr2(k,o,t,smask)
    I(f"v_pk_mul_f32 {P(q)}, {P(o)}, {P(rc)}")
    I(f"v_pk_fma_f32 {P(o)}, {P(q)}, {P(sd)}, {P(o)} neg_lo:[1,0,0] neg_hi:[1,0,0]")
    I(f"v_pk_fma_f32 {P(o)}, {P(o)}, {P(rc)}, {P(q)}")
    bfr2(k,o,t,smask)
    I(f"v_mul_f32 v{o}, v{o}, v{c1}"); I(f"v_mul_f32 v{o+1}, v{o+1}, v{c1}")
    bfr2(k,o,t,smask)
    I(f"v_add_f32 v{o}, v{o}, v{sh}"); I(f"v_add_f32 v{o+1}, v{o+1}, v{sh}")
    bfr2(k,o,t,smask)
    return o

LDS_ROW=544
def rows_addr_setup(k):
    I=k.I
    r={}
    I("v_lshrrev_b32 v1, 6, v0"); I("v_readfirstlane_b32 s3, v1")
    I("v_and_b32 v1, 63, v0")
    r["lane"]=1
    I("v_and_b32 v2, 7, v0"); I("s_lshl_b32 s14, s3, 3"); I("v_add_u32 v2, s14, v2")
    I("v_lshrrev_b32 v3, 3, v1")
    r["f"]=2; r["b"]=3
    I(f"s_mov_b32 s14, {LDS_ROW}"); I("v_mul_lo_u32 v4, v2, s14"); I("v_lshl_add_u32 v4, v3, 3, v4")
    r["lds2"]=4
    I(f"s_mul_i32 s14, s3, {LDS_ROW}"); I("v_lshlrev_b32 v5, 3, v1"); I("v_add_u32 v5, s14, v5")
    r["lds1"]=5
    I("v_lshrrev_b32 v6, 2, v2"); I("v_mul_u32_u24 v7, 10, v3"); I("v_add_u32 v6, v6, v7")
    r["kb"]=6
    I("v_and_b32 v7, 3, v2"); I("s_lshl_b32 s14, s2, 2"); I("v_add_u32 v7, s14, v7"); I("v_lshlrev_b32 v7, 4, v7")
    I("v_lshl_add_u32 v8, v6, 14, v7")
    I("v_sub_u32 v9, 79, v6"); I("v_lshl_add_u32 v9, v9, 14, v7"); I("v_add_u32 v9, 8, v9")
    r["glo"]=8; r["ghi"]=9
    return r

def t_soffs(k,sb):
    for k3 in range(8):
        v = k3*80*16384 if k3<4 else (561-80*k3)*16384
        k.I(f"s_mov_b32 s{sb+k3}, 0x{v:x}")

def tw_list(k,cf,vidx,n,period,tmp):
    I=k.I
    out=[None]
    for m in range(1,n):
        I(f"v_mul_u32_u24 v{tmp}, {m}, v{vidx}")
        I(f"v_cvt_f32_u32 v{tmp}, v{tmp}")
        I(f"v_mul_f32 v{tmp}, {fhex(1.0/period)}, v{tmp}")
        I(f"v_fract_f32 v{tmp}, v{tmp}")
        out.append(cf.twiddle(tmp))
    return out

def k_rowsfwd():
    k=Kern("rowsfwd_kernel"); I=k.I
    I("s_cmp_ge_u32 s2, 256"); I("s_cbranch_scc1 L1_end")
    I("s_load_dwordx2 s[4:5], s[0:1], 0"); I("s_load_dwordx2 s[6:7], s[0:1], 96")
    r=rows_addr_setup(k)
    sc,sn=set_consts(k,32,["rsqrt2","c1","c2","s1","s2"])
    cf=CF(k,sc)
    t_soffs(k,48)
    I("s_mov_b32 s15, 0xffff0000"); smask="s15"
    k.setbase(12)
    I("s_waitcnt lgkmcnt(0)")
    srd(k,16,4,SZ_X); srd(k,20,6,6*D*4,WS_MODF); srd(k,24,6,321*16384,WS_T)
    tmp=k.v1(); tmp2=k.v1()
    tw64=tw_list(k,cf,r["b"],8,64,tmp)
    I("s_cmp_ge_u32 s3, 4"); I("s_cbranch_scc1 L1_pass2")
    z=[k.cp() for _ in range(10)]
    for j in range(10): I(f"v_mov_b32 v{z[j]}, 0"); I(f"v_mov_b32 v{z[j]+1}, 0")
    vo=k.v1(); vo4=k.v1()
    I(f"v_lshlrev_b32 v{vo}, 1, v1"); I(f"v_lshlrev_b32 v{vo4}, 2, v1")
    I("s_lshl_b32 s14, s2, 2"); I("s_add_u32 s14, s14, s3"); I("s_mul_i32 s14, s14, 2560")
    for j in range(10):
        I(f"buffer_load_short_d16_hi v{z[j]}, v{vo}, s[16:19], s14 offen offset:{128*j}")
        I(f"buffer_load_short_d16_hi v{z[j]+1}, v{vo}, s[16:19], s14 offen offset:{1280+128*j}")
    c1=[k.v1() for _ in range(10)]; sh=[k.v1() for _ in range(10)]
    for j in range(10):
        I(f"buffer_load_dword v{sh[j]}, v{vo4}, s[20:23], 0 offen offset:{256*j}")
    I("s_movk_i32 s14, 2560")
    for j in range(10):
        I(f"buffer_load_dword v{c1[j]}, v{vo4}, s[20:23], s14 offen offset:{256*j}")
    tw640=tw_list(k,cf,r["lane"],10,640,tmp)
    sinv=k.cp(); I(f"v_mov_b32 v{sinv}, {fhex(1.0/640)}"); I(f"v_mov_b32 v{sinv+1}, {fhex(1.0/640)}")
    I("s_waitcnt vmcnt(20)")
    mean,sd,rc=ln_stats(k,cf,z,smask,28,30,sinv)
    I("s_waitcnt vmcnt(0)")
    q=k.cp()
    for j in range(10): ln_apply(k,cf,z[j],mean,sd,rc,c1[j],sh[j],smask,tmp,q)
    k.fr(q,mean,sd,rc,sinv)
    y=cf.r10(z,-1)
    for k1 in range(10):
        if k1: cf.mul(y[k1],tw640[k1],conj=True,d=y[k1])
        I(f"ds_write_b64 v{r['lds1']}, {P(y[k1])} offset:{k1*4*LDS_ROW}")
    k.fr(*y); k.fr(*tw640[1:])
    k.label("L1_pass2")
    I("s_waitcnt lgkmcnt(0)"); I("s_barrier")
    x=[k.cp() for _ in range(8)]
    for a in range(8): I(f"ds_read_b64 {P(x[a])}, v{r['lds2']} offset:{64*a}")
    I("s_waitcnt lgkmcnt(0)")
    y=cf.r8(x,-1)
    for m in range(1,8): cf.mul(y[m],tw64[m],conj=True,d=y[m])
    y=cf.xhi3(y)
    y=cf.r8(y,-1)
    for k3 in range(8):
        I(f"buffer_store_dwordx2 {P(y[k3])}, v{r['glo'] if k3<4 else r['ghi']}, s[24:27], s{48+k3} offen")
    I(f"v_cmp_eq_u32 vcc, 0, v{r['kb']}"); I("s_and_saveexec_b64 s[28:29], vcc"); I("s_cbranch_execz L1_end")
    I(f"buffer_store_dwordx2 {P(y[0])}, v{r['glo']}, s[24:27], 0 offen offset:8")
    I(f"s_mov_b32 s14, 0x{320*16384:x}")
    I(f"buffer_store_dwordx2 {P(y[4])}, v{r['glo']}, s[24:27], s14 offen")
    k.label("L1_end")
    I("s_endpgm")
    return k, dict(grid=256,block=320,lds=40*LDS_ROW)

def emit(kernels, path):
    hdr=open("cdna_kernels/%s.s.ref"%NAME).read().split("; Override launch")[0]
    out=[hdr.rstrip("\n")]
    for k,cfg in kernels:
        out.append(f"; @launch kernel={k.name} grid=({cfg['grid']},1,1) block=({cfg['block']},1,1) lds={cfg['lds']}")
    out.append('.amdgcn_target "amdgcn-amd-amdhsa--gfx950"')
    out.append(".text")
    seen=set()
    for k,cfg in kernels:
        if k.name in seen: continue
        seen.add(k.name)
        out.append(f".globl {k.name}\n.p2align 8\n.type {k.name},@function\n{k.name}:")
        out+=k.lines
    out.append('.section .rodata,"a"')
    seen=set()
    for k,cfg in kernels:
        if k.name in seen: continue
        seen.add(k.name)
        nv=k.maxv+1; acc=(nv+3)//4*4
        out.append(f""".p2align 6
.amdhsa_kernel {k.name}
  .amdhsa_next_free_vgpr {nv}
  .amdhsa_next_free_sgpr {min(102,k.maxs+1)}
  .amdhsa_accum_offset {acc}
  .amdhsa_group_segment_fixed_size 0
  .amdhsa_kernarg_size 104
  .amdhsa_user_sgpr_count 2
  .amdhsa_user_sgpr_kernarg_segment_ptr 1
  .amdhsa_system_sgpr_workgroup_id_x 1
  .amdhsa_float_denorm_mode_32 3
.end_amdhsa_kernel""")
        print(f"{k.name}: {k.count} instrs, vgpr {nv}, sgpr {k.maxs+1}", file=sys.stderr)
    open(path,"w").write("\n".join(out)+"\n")

if __name__=="__main__":
    ks=[k_prep(),k_rowsfwd()]
    try:
        from gen2 import more
        ks+=more()
    except ImportError: pass
    emit(ks, sys.argv[1] if len(sys.argv)>1 else "cdna_kernels/%s.s"%NAME)
```
